```python
import torch

def _softmax(x, axis=-1):
    return torch.softmax(x, dim=axis)
def _gelu(x):
    return torch.nn.functional.gelu(x, approximate="tanh")
def _silu(x):
    return torch.nn.functional.silu(x)
def _sigmoid(x):
    return torch.sigmoid(x)
def _layernorm(x, axis=-1, eps=1e-5):
    m = x.mean(dim=axis, keepdim=True)
    v = x.var(dim=axis, keepdim=True, unbiased=False)
    return (x - m) / torch.sqrt(v + eps)
def _scatter_add(tgt, idx, src, axis=0):
    return tgt.clone().index_add_(axis, idx, src)
def _segment_sum(src, seg, n):
    out = torch.zeros((n,) + src.shape[1:], dtype=src.dtype)
    return out.index_add_(0, seg, src)
def _pad(x, pw):
    flat = tuple(v for pair in reversed(pw) for v in pair)
    return torch.nn.functional.pad(x, flat)

kernel_name = 'interleave_layers__linear_kernel_hedgehog__dense_activation_squared_relu__prompt'

def setup_inputs():

    _w = (lambda a: (lambda t: t.to(torch.bfloat16) if t.is_floating_point() else t)(torch.as_tensor(a)))
    def _A_setup():
        B, S, D, H = 1, 2048, 448, 16
        Dh = D // H
        return {
            "x": _w((lambda *s: torch.randn(*s, dtype=torch.bfloat16) * 0.05)(B, S, D)),
            "wqkv": _w((lambda *s: torch.randn(*s, dtype=torch.bfloat16) * 0.2)(D, 3 * D)),
            "w_phi": _w((lambda *s: torch.randn(*s, dtype=torch.bfloat16) * 0.2)(H, Dh, Dh) * (Dh ** -0.5)),
            "wo": _w((lambda *s: torch.randn(*s, dtype=torch.bfloat16) * 0.05)(D, D)),
        }
    _A_in = _A_setup()

    def _B_setup():
        B, S, D, F = 1, 2048, 448, 1792
        return {
            "x": _w((lambda *s: torch.randn(*s, dtype=torch.bfloat16) * 0.05)(B, S, D)),
            "w1": _w((lambda *s: torch.randn(*s, dtype=torch.bfloat16) * 0.05)(D, F)),
            "b1": _w((lambda *s: torch.randn(*s, dtype=torch.bfloat16) * 0.2)(F)),
            "w2": _w((lambda *s: torch.randn(*s, dtype=torch.bfloat16) * 0.05)(F, D)),
            "b2": _w((lambda *s: torch.randn(*s, dtype=torch.bfloat16) * 0.4)(D)),
        }
    _B_in = _B_setup()

    return {
        "A_x": _A_in["x"],
        "A_wqkv": _A_in["wqkv"],
        "A_w_phi": _A_in["w_phi"],
        "A_wo": _A_in["wo"],
        "B_x": _B_in["x"],
        "B_w1": _B_in["w1"],
        "B_b1": _B_in["b1"],
        "B_w2": _B_in["w2"],
        "B_b2": _B_in["b2"],
    }

def reference(A_x, A_wqkv, A_w_phi, A_wo, B_x, B_w1, B_b1, B_w2, B_b2):
    def _A_ref(x, wqkv, w_phi, wo):
        B, S, D = x.shape
        H = 16; Dh = D // H
        qkv = (lambda x, *d: x.permute(*d))((x @ wqkv).reshape(B, S, 3, H, Dh), 2, 0, 3, 1, 4)
        q, k, v = qkv[0], qkv[1], qkv[2]
        pq = torch.einsum("bhsd,hdf->bhsf", q, w_phi)
        pk = torch.einsum("bhsd,hdf->bhsf", k, w_phi)
        phi_q = torch.concatenate([_softmax(pq, axis=-1), _softmax(-pq, axis=-1)], axis=-1)
        phi_k = torch.concatenate([_softmax(pk, axis=-1), _softmax(-pk, axis=-1)], axis=-1)
        kv = torch.einsum("bhsf,bhsd->bhfd", phi_k, v)
        z  = torch.einsum("bhsf->bhf", phi_k)
        num = torch.einsum("bhqf,bhfd->bhqd", phi_q, kv)
        den = torch.einsum("bhqf,bhf->bhq", phi_q, z)[..., None] + 1e-6
        o = num / den
        return (lambda x, *d: x.permute(*d))(o, 0, 2, 1, 3).reshape(B, S, D) @ wo

    def _B_ref(x, w1, b1, w2, b2):
        h = torch.einsum("bsd,df->bsf", x, w1) + b1
        zero = torch.zeros_like(h)
        r = torch.where(h > zero, h, zero)
        h = r * r
        out = torch.einsum("bsf,fd->bsd", h, w2) + b2
        return out

    x = A_x
    x = x + _A_ref(_layernorm(x, axis=-1), A_wqkv, A_w_phi, A_wo)
    x = x + _B_ref(_layernorm(x, axis=-1), B_w1, B_b1, B_w2, B_b2)
    x = x + _A_ref(_layernorm(x, axis=-1), A_wqkv, A_w_phi, A_wo)
    x = x + _B_ref(_layernorm(x, axis=-1), B_w1, B_b1, B_w2, B_b2)
    return x
```

```python
S, D, H, DH, F = 2048, 448, 16, 28, 1792


def align(x, a=4096):
    return (x + a - 1) // a * a


WS = {}
_off = [0]


def region(name, size):
    WS[name] = (_off[0], size)
    _off[0] = align(_off[0] + size)


region('WQKV', 16 * 14 * 6 * 1024)
region('WO', 16 * 32 * 1024)
region('W1', 14 * 112 * 1024)
region('W2', 56 * 28 * 1024)
region('WPHI', 16 * 2 * 1024)
region('KVACC', 2 * 16 * 8 * 1024)
region('X1', S * D * 2)
region('X2', S * D * 2)
region('X3', S * D * 2)
region('PHIQ', 128 * 16 * 2 * 1024)
region('HB', S * F * 2)
WS_TOTAL = _off[0]


def vr(a, n=1):
    return f"v{a}" if n == 1 else f"v[{a}:{a + n - 1}]"


def sr(a, n=1):
    return f"s{a}" if n == 1 else f"s[{a}:{a + n - 1}]"


class Kern:
    def __init__(self, name, grid, block, lds, nvgpr=256, nsgpr=96):
        self.name = name
        self.grid = grid
        self.block = block
        self.lds = lds
        self.nvgpr = nvgpr
        self.nsgpr = nsgpr
        self.lines = []
        self.vmq = []
        self.lgq = []
        self._lab = 0

    def e(self, s):
        self.lines.append("    " + s)

    def c(self, s):
        self.lines.append("    ; " + s)

    def label(self, l):
        self.lines.append(l + ":")

    def newlabel(self, p="L"):
        self._lab += 1
        return f"{self.name}_{p}{self._lab}"

    def vm(self, tag):
        self.vmq.append(tag)

    def vm_wait(self, tag):
        if tag not in self.vmq:
            return
        idx = max(i for i, t in enumerate(self.vmq) if t == tag)
        n = len(self.vmq) - 1 - idx
        assert n <= 63
        self.e(f"s_waitcnt vmcnt({n})")
        self.vmq = self.vmq[idx + 1:]

    def vm_wait_all(self):
        self.e("s_waitcnt vmcnt(0)")
        self.vmq = []

    def lg(self, tag):
        self.lgq.append(tag)

    def lg_wait(self, tag):
        if tag not in self.lgq:
            return
        idx = max(i for i, t in enumerate(self.lgq) if t == tag)
        n = len(self.lgq) - 1 - idx
        assert n <= 15
        self.e(f"s_waitcnt lgkmcnt({n})")
        self.lgq = self.lgq[idx + 1:]

    def lg_wait_all(self):
        self.e("s_waitcnt lgkmcnt(0)")
        self.lgq = []

    def srd(self, sb, pptr, off, size):
        if off:
            self.e(f"s_add_u32 s{sb}, s{pptr}, {off:#x}")
            self.e(f"s_addc_u32 s{sb + 1}, s{pptr + 1}, 0")
        else:
            self.e(f"s_mov_b32 s{sb}, s{pptr}")
            self.e(f"s_mov_b32 s{sb + 1}, s{pptr + 1}")
        self.e(f"s_mov_b32 s{sb + 2}, {size:#x}")
        self.e(f"s_mov_b32 s{sb + 3}, 0x00020000")

    def ws_srd(self, sb, pws, name, sub_off=0, sub_size=None):
        off, size = WS[name]
        self.srd(sb, pws, off + sub_off, size - sub_off if sub_size is None else sub_size)

    def text(self):
        out = []
        out.append(f".globl {self.name}")
        out.append(".p2align 8")
        out.append(f".type {self.name},@function")
        out.append(f"{self.name}:")
        out += self.lines
        return "\n".join(out)

    def desc(self):
        acc = (self.nvgpr + 3) // 4 * 4
        return "\n".join([
            f".amdhsa_kernel {self.name}",
            f"  .amdhsa_next_free_vgpr {self.nvgpr}",
            f"  .amdhsa_next_free_sgpr {self.nsgpr}",
            f"  .amdhsa_accum_offset {acc}",
            "  .amdhsa_group_segment_fixed_size 0",
            "  .amdhsa_kernarg_size 96",
            "  .amdhsa_user_sgpr_count 2",
            "  .amdhsa_user_sgpr_kernarg_segment_ptr 1",
            "  .amdhsa_system_sgpr_workgroup_id_x 1",
            ".end_amdhsa_kernel",
        ])


def magic(d):
    return (2 ** 32 + d - 1) // d
```

```python
from core import *
from kcommon import *

LOG2E = 1.4426950408889634


def gen(layer):
    name = f"k1l{layer}_kernel"
    k = Kern(name, (256, 1, 1), (256, 1, 1), 32768, nvgpr=208, nsgpr=64)
    e = k.e
    e("s_cmp_ge_u32 s2, 256")
    e(f"s_cbranch_scc1 {name}_done")
    e("s_load_dwordx2 s[24:25], s[0:1], 88")
    e("s_load_dwordx2 s[26:27], s[0:1], 0")
    e("v_lshrrev_b32 v9, 6, v0")
    lane_setup(k, 1, 2, 3, 4)
    e("v_readfirstlane_b32 s3, v9")
    afrag_addr_setup(k, 5, 3, 4, 9)
    e("s_lshr_b32 s28, s2, 2")
    e("s_and_b32 s29, s2, 3")
    e("s_lshl_b32 s29, s29, 2")
    e("s_add_u32 s29, s29, s3")
    e("s_waitcnt lgkmcnt(0)")
    if layer == 1:
        k.srd(4, 26, 0, S * D * 2)
    else:
        k.ws_srd(4, 24, 'X2')
    k.ws_srd(8, 24, 'WQKV')
    k.ws_srd(12, 24, 'WPHI')
    k.ws_srd(16, 24, 'PHIQ')
    k.ws_srd(20, 24, 'KVACC', sub_off=(layer - 1) * 131072, sub_size=131072)
    e(f"s_mul_i32 s30, s28, {32 * 896}")
    e(f"s_mul_i32 s31, s29, {14 * 6144}")
    ln_loads(k, 4, 30, 160, 10, 9)
    e("s_lshl_b32 s32, s29, 11")
    e("buffer_load_dwordx4 v[152:155], v2, s[12:15], s32 offen")
    k.vm('wp')
    e("buffer_load_dwordx4 v[156:159], v2, s[12:15], s32 offen offset:1024")
    k.vm('wp')
    MT, NT, KS, PD = 2, 6, 14, 3
    for s in range(PD):
        issue_b(k, s, NT, 64 + s * 24, 2, 8, 31, 33, 6144)
    k.vm_wait('lnx')
    ln_compute_store(k, 160, 188, 34)
    e("s_waitcnt lgkmcnt(0)")
    e("s_barrier")
    main_loop(k, MT, NT, KS, PD, 16, 64, 136, 5, 2, 8, 31, 33, 6144, normal_tiles=(4, 5))

    def accQ(i, t): return 16 + (t * 2 + i) * 4
    def accK(i, t): return 16 + ((2 + t) * 2 + i) * 4
    def accV(i, t): return 16 + ((4 + t) * 2 + i) * 4

    e("s_mov_b32 s36, 0")
    e("s_mov_b32 s37, 0xffff0000")
    e("s_mov_b32 s38, 0xf000f000")
    e("s_mov_b32 s39, 0xf000f000")
    e("s_mov_b32 s40, 0x10001000")
    e("s_mov_b32 s41, 0x10001000")
    e(f"s_mov_b32 s42, {f32bits(LOG2E):#x}")
    e("s_nop 7")
    e("s_nop 3")
    for X, base in ((accQ, 64), (accK, 72)):
        for i in range(2):
            for t in range(2):
                a = X(i, t)
                e(f"v_cvt_pk_bf16_f32 v{base + i * 4 + 2 * t}, v{a}, v{a + 1}")
                e(f"v_cvt_pk_bf16_f32 v{base + i * 4 + 2 * t + 1}, v{a + 2}, v{a + 3}")
    e("s_nop 1")
    def SQ(i, t): return 80 + (i * 2 + t) * 4
    def SK(i, t): return 96 + (i * 2 + t) * 4
    for i in range(2):
        for t in range(2):
            e(f"v_mfma_f32_16x16x32_bf16 {vr(SQ(i, t), 4)}, {vr(152 + 4 * t, 4)}, {vr(64 + 4 * i, 4)}, 0")
    for i in range(2):
        for t in range(2):
            e(f"v_mfma_f32_16x16x32_bf16 {vr(SK(i, t), 4)}, {vr(72 + 4 * i, 4)}, {vr(152 + 4 * t, 4)}, 0")
    e("s_nop 7")
    e("s_nop 3")
    for a in range(80, 112, 2):
        e(f"v_cvt_pk_bf16_f32 v112, v{a}, v{a + 1}")
        e(f"v_lshlrev_b32 v{a}, 16, v112")
        e(f"v_and_b32 v{a + 1}, 0xffff0000, v112")

    def cross_groups(op, x, tmp):
        e(f"v_mov_b32 v{tmp}, v{x}")
        e("s_nop 1")
        e(f"v_permlane16_swap_b32 v{x}, v{tmp}")
        e(f"{op} v{x}, v{x}, v{tmp}")
        e(f"v_mov_b32 v{tmp}, v{x}")
        e("s_nop 1")
        e(f"v_permlane32_swap_b32 v{x}, v{tmp}")
        e(f"{op} v{x}, v{x}, v{tmp}")

    for i in range(2):
        S0, S1 = SQ(i, 0), SQ(i, 1)
        mx, mn, tp = 112, 113, 114
        EP = 116
        for r in range(4):
            e(f"v_cndmask_b32_e64 v{S1 + r}, v{S1 + r}, v{S0 + r}, s[36:37]")
        for op3, op2, d in (("v_max3_f32", "v_max_f32", mx), ("v_min3_f32", "v_min_f32", mn)):
            e(f"{op3} v{d}, v{S0}, v{S0 + 1}, v{S0 + 2}")
            e(f"{op3} v{d}, v{d}, v{S0 + 3}, v{S1}")
            e(f"{op3} v{d}, v{d}, v{S1 + 1}, v{S1 + 2}")
            e(f"{op2} v{d}, v{d}, v{S1 + 3}")
        cross_groups("v_max_f32", mx, tp)
        cross_groups("v_min_f32", mn, tp)
        e(f"v_mul_f32 v{mx}, s42, v{mx}")
        e(f"v_mul_f32 v{mn}, s42, v{mn}")
        vals = [S0 + r for r in range(4)] + [S1 + r for r in range(4)]
        for j, sv in enumerate(vals):
            e(f"v_fma_f32 v{EP + j}, v{sv}, s42, -v{mx}")
            e(f"v_fma_f32 v{sv}, -v{sv}, s42, v{mn}")
        for j, sv in enumerate(vals):
            e(f"v_exp_f32 v{EP + j}, v{EP + j}")
            e(f"v_exp_f32 v{sv}, v{sv}")
        e("s_nop 0")
        for r in range(4):
            e(f"v_cndmask_b32_e64 v{EP + 4 + r}, v{EP + 4 + r}, 0, s[36:37]")
            e(f"v_cndmask_b32_e64 v{S1 + r}, v{S1 + r}, 0, s[36:37]")
        sp, sn = 112, 113
        e(f"v_add_f32 v{sp}, v{EP}, v{EP + 1}")
        e(f"v_add_f32 v{sn}, v{vals[0]}, v{vals[1]}")
        for j in range(2, 8):
            e(f"v_add_f32 v{sp}, v{sp}, v{EP + j}")
            e(f"v_add_f32 v{sn}, v{sn}, v{vals[j]}")
        cross_groups("v_add_f32", sp, tp)
        cross_groups("v_add_f32", sn, tp)
        e(f"v_rcp_f32 v{sp}, v{sp}")
        e(f"v_rcp_f32 v{sn}, v{sn}")
        e("s_nop 0")
        for j, sv in enumerate(vals):
            e(f"v_mul_f32 v{EP + j}, v{EP + j}, v{sp}")
            e(f"v_mul_f32 v{sv}, v{sv}, v{sn}")
        for u, src in ((0, [EP + j for j in range(8)]), (1, vals)):
            for q in range(4):
                e(f"v_cvt_pk_bf16_f32 v{124 + u * 4 + q}, v{src[2 * q]}, v{src[2 * q + 1]}")
        e("s_lshl_b32 s43, s28, 5")
        e(f"s_add_u32 s43, s43, {i * 16}")
        e("s_add_u32 s43, s43, s29")
        e("s_lshl_b32 s43, s43, 11")
        e("buffer_store_dwordx4 v[124:127], v2, s[16:19], s43 offen")
        e("buffer_store_dwordx4 v[128:131], v2, s[16:19], s43 offen offset:1024")
        e("s_nop 1")

    def PA(sign, t): return 16 + (sign * 2 + t) * 4
    for i in range(2):
        S0, S1 = SK(i, 0), SK(i, 1)
        MX, MN, EP = 112, 116, 120
        for r in range(4):
            e(f"v_cndmask_b32_e64 v{S1 + r}, v{S1 + r}, v{S0 + r}, s[38:39]")
        for r in range(4):
            e(f"v_max_f32 v{MX + r}, v{S0 + r}, v{S1 + r}")
            e(f"v_min_f32 v{MN + r}, v{S0 + r}, v{S1 + r}")
        e("s_nop 0")
        for step in (8, 4, 2, 1):
            for r in range(4):
                e(f"v_max_f32_dpp v{MX + r}, v{MX + r}, v{MX + r} row_ror:{step} row_mask:0xf bank_mask:0xf")
                e(f"v_min_f32_dpp v{MN + r}, v{MN + r}, v{MN + r} row_ror:{step} row_mask:0xf bank_mask:0xf")
        for r in range(4):
            e(f"v_mul_f32 v{MX + r}, s42, v{MX + r}")
            e(f"v_mul_f32 v{MN + r}, s42, v{MN + r}")
        for t, Sx in ((0, S0), (1, S1)):
            for r in range(4):
                e(f"v_fma_f32 v{EP + 4 * t + r}, v{Sx + r}, s42, -v{MX + r}")
                e(f"v_fma_f32 v{Sx + r}, -v{Sx + r}, s42, v{MN + r}")
        for t, Sx in ((0, S0), (1, S1)):
            for r in range(4):
                e(f"v_exp_f32 v{EP + 4 * t + r}, v{EP + 4 * t + r}")
                e(f"v_exp_f32 v{Sx + r}, v{Sx + r}")
        e("s_nop 0")
        for r in range(4):
            e(f"v_cndmask_b32_e64 v{EP + 4 + r}, v{EP + 4 + r}, 0, s[38:39]")
            e(f"v_cndmask_b32_e64 v{S1 + r}, v{S1 + r}, 0, s[38:39]")
        for r in range(4):
            e(f"v_add_f32 v{MX + r}, v{EP + r}, v{EP + 4 + r}")
            e(f"v_add_f32 v{MN + r}, v{S0 + r}, v{S1 + r}")
        e("s_nop 0")
        for step in (8, 4, 2, 1):
            for r in range(4):
                e(f"v_add_f32_dpp v{MX + r}, v{MX + r}, v{MX + r} row_ror:{step} row_mask:0xf bank_mask:0xf")
                e(f"v_add_f32_dpp v{MN + r}, v{MN + r}, v{MN + r} row_ror:{step} row_mask:0xf bank_mask:0xf")
        for r in range(4):
            e(f"v_rcp_f32 v{MX + r}, v{MX + r}")
            e(f"v_rcp_f32 v{MN + r}, v{MN + r}")
        e("s_nop 0")
        for t, Sx in ((0, S0), (1, S1)):
            for r in range(4):
                e(f"v_mul_f32 v{EP + 4 * t + r}, v{EP + 4 * t + r}, v{MX + r}")
                e(f"v_mul_f32 v{Sx + r}, v{Sx + r}, v{MN + r}")
        for t, Sx in ((0, S0), (1, S1)):
            for q in range(2):
                e(f"v_cvt_pk_bf16_f32 v{PA(0, t) + i * 2 + q}, v{EP + 4 * t + 2 * q}, v{EP + 4 * t + 2 * q + 1}")
                e(f"v_cvt_pk_bf16_f32 v{PA(1, t) + i * 2 + q}, v{Sx + 2 * q}, v{Sx + 2 * q + 1}")
    def PV(tv): return 32 + tv * 4
    for i in range(2):
        for r in range(4):
            a = accV(i, 1) + r
            e(f"v_cndmask_b32_e64 v{a}, v{a}, 1.0, s[40:41]")
    for tv in range(2):
        for i in range(2):
            a = accV(i, tv)
            e(f"v_cvt_pk_bf16_f32 v{PV(tv) + i * 2}, v{a}, v{a + 1}")
            e(f"v_cvt_pk_bf16_f32 v{PV(tv) + i * 2 + 1}, v{a + 2}, v{a + 3}")
    e("s_nop 1")
    for sign in range(2):
        for t in range(2):
            for tv in range(2):
                tile = sign * 4 + t * 2 + tv
                e(f"v_mfma_f32_16x16x32_bf16 {vr(64 + tile * 4, 4)}, {vr(PA(sign, t), 4)}, {vr(PV(tv), 4)}, 0")
    e("v_lshlrev_b32 v9, 2, v1")
    e("s_lshl_b32 s43, s29, 13")
    e("s_add_u32 s44, s43, 4096")
    e("s_nop 7")
    e("s_nop 3")
    for tile in range(8):
        so = "s43" if tile < 4 else "s44"
        for r in range(4):
            e(f"buffer_atomic_add_f32 v{64 + tile * 4 + r}, v9, s[20:23], {so} offen offset:{(tile % 4) * 1024 + r * 256}")
    k.label(f"{name}_done")
    e("s_endpgm")
    return k
```

```python
from core import *
from kcommon import *


def gen(layer):
    name = f"k2l{layer}_kernel"
    k = Kern(name, (256, 1, 1), (256, 1, 1), 16384, nvgpr=216, nsgpr=64)
    e = k.e
    e("s_cmp_ge_u32 s2, 256")
    e(f"s_cbranch_scc1 {name}_done")
    e("s_load_dwordx2 s[24:25], s[0:1], 88")
    e("s_load_dwordx2 s[26:27], s[0:1], 0")
    e("v_lshrrev_b32 v9, 6, v0")
    lane_setup(k, 1, 2, 3, 4)
    e("v_readfirstlane_b32 s3, v9")
    afrag_addr_setup(k, 5, 3, 4, 9)
    e("s_lshr_b32 s28, s2, 1")
    e("s_and_b32 s29, s2, 1")
    e("s_lshl_b32 s30, s29, 4")
    e("s_lshl_b32 s31, s3, 2")
    e("s_add_u32 s30, s30, s31")
    e("s_lshl_b32 s31, s30, 10")
    e("s_waitcnt lgkmcnt(0)")
    if layer == 1:
        k.srd(4, 26, 0, S * D * 2)
    else:
        k.ws_srd(4, 24, 'X2')
    k.ws_srd(8, 24, 'WO')
    k.ws_srd(12, 24, 'PHIQ')
    k.ws_srd(16, 24, 'KVACC', sub_off=(layer - 1) * 131072, sub_size=131072)
    k.ws_srd(20, 24, 'X1' if layer == 1 else 'X3')
    e("v_lshlrev_b32 v10, 2, v1")
    MT, NT, KS, PD = 1, 4, 16, 4
    ACC, BB, AB = 16, 32, 96
    SET = [104, 144]
    KA, NN, T = 184, 200, 208

    def head_loads(hh):
        st = SET[hh % 2]
        e("s_lshl_b32 s33, s3, 2")
        e(f"s_add_u32 s33, s33, {hh}")
        e("s_lshl_b32 s34, s28, 4")
        e("s_add_u32 s34, s34, s33")
        e("s_lshl_b32 s34, s34, 11")
        e(f"buffer_load_dwordx4 {vr(st, 4)}, v2, s[12:15], s34 offen")
        k.vm(f"h{hh}")
        e(f"buffer_load_dwordx4 {vr(st + 4, 4)}, v2, s[12:15], s34 offen offset:1024")
        k.vm(f"h{hh}")
        e("s_lshl_b32 s34, s33, 13")
        e("s_add_u32 s35, s34, 4096")
        for tile in range(8):
            so = "s34" if tile < 4 else "s35"
            for r in range(4):
                e(f"buffer_load_dword v{st + 8 + tile * 4 + r}, v10, s[16:19], {so} offen offset:{(tile % 4) * 1024 + r * 256}")
                k.vm(f"h{hh}")

    head_loads(0)
    head_loads(1)
    for s in range(PD):
        issue_b(k, s, NT, BB + s * 16, 2, 8, 31, 32, 32768)
    e("v_lshlrev_b32 v11, 2, v3")
    e("v_add_u32 v11, 192, v11")
    e("s_mov_b32 s36, 0")
    e("s_mov_b32 s37, 0xffff0000")
    e(f"s_mov_b32 s38, {f32bits(1e-6):#x}")
    for hh in range(4):
        st = SET[hh % 2]
        k.vm_wait(f"h{hh}")
        for u in range(2):
            for tv in range(2):
                ka = KA + (tv * 2 + u) * 4
                for t in range(2):
                    kv = st + 8 + (u * 4 + t * 2 + tv) * 4
                    e(f"v_cvt_pk_bf16_f32 v{ka + 2 * t}, v{kv}, v{kv + 1}")
                    e(f"v_cvt_pk_bf16_f32 v{ka + 2 * t + 1}, v{kv + 2}, v{kv + 3}")
        e("s_nop 1")
        for tv in range(2):
            e(f"v_mfma_f32_16x16x32_bf16 {vr(NN + 4 * tv, 4)}, {vr(KA + (tv * 2) * 4, 4)}, {vr(st, 4)}, 0")
        for tv in range(2):
            e(f"v_mfma_f32_16x16x32_bf16 {vr(NN + 4 * tv, 4)}, {vr(KA + (tv * 2 + 1) * 4, 4)}, {vr(st + 4, 4)}, {vr(NN + 4 * tv, 4)}")
        if hh + 2 < 4:
            e("s_nop 7")
            e("s_nop 3")
            head_loads(hh + 2)
        e("s_nop 7")
        e("s_nop 3")
        e(f"ds_bpermute_b32 v{T}, v11, v{NN + 4}")
        for a in range(NN, NN + 8, 2):
            e(f"v_cvt_pk_bf16_f32 v{T + 1}, v{a}, v{a + 1}")
            e(f"v_lshlrev_b32 v{a}, 16, v{T + 1}")
            e(f"v_and_b32 v{a + 1}, 0xffff0000, v{T + 1}")
        e("s_waitcnt lgkmcnt(0)")
        e(f"v_cvt_pk_bf16_f32 v{T}, v{T}, v{T}")
        e(f"v_lshlrev_b32 v{T}, 16, v{T}")
        e(f"v_add_f32 v{T}, s38, v{T}")
        e(f"v_cvt_pk_bf16_f32 v{T}, v{T}, v{T}")
        e(f"v_lshlrev_b32 v{T}, 16, v{T}")
        e(f"v_rcp_f32 v{T}, v{T}")
        e("s_nop 0")
        for a in range(NN, NN + 8):
            e(f"v_mul_f32 v{a}, v{a}, v{T}")
        for tv in range(2):
            a = NN + 4 * tv
            e(f"v_cvt_pk_bf16_f32 v{T + 2 + 2 * tv}, v{a}, v{a + 1}")
            e(f"v_cvt_pk_bf16_f32 v{T + 3 + 2 * tv}, v{a + 2}, v{a + 3}")
        e(f"v_cndmask_b32_e64 v{T + 4}, v{T + 4}, 0, s[36:37]")
        e(f"v_cndmask_b32_e64 v{T + 5}, v{T + 5}, 0, s[36:37]")
        for tv in range(2):
            e(f"v_lshrrev_b32 v12, 1, v4")
            e(f"v_add_u32 v12, {4 * hh + 2 * tv}, v12")
            e("v_xor_b32 v12, v12, v3")
            e("v_lshlrev_b32 v12, 4, v12")
            e("v_lshl_add_u32 v12, v3, 10, v12")
            e("v_and_b32 v13, 1, v4")
            e("v_lshl_add_u32 v12, v13, 3, v12")
            e("s_lshl_b32 s39, s3, 8")
            e(f"v_add_u32 v12, s39, v12")
            e(f"ds_write_b64 v12, v[{T + 2 + 2 * tv}:{T + 3 + 2 * tv}]")
    e("s_waitcnt lgkmcnt(0)")
    e("s_barrier")
    main_loop(k, MT, NT, KS, PD, ACC, BB, AB, 5, 2, 8, 31, 32, 32768)
    e("s_cmp_ge_u32 s30, 28")
    e(f"s_cbranch_scc1 {name}_done")
    e("v_mul_u32_u24 v12, 896, v3")
    e("v_lshl_add_u32 v12, v4, 3, v12")
    e(f"s_mul_i32 s40, s28, {16 * 896}")
    e("s_lshl_b32 s41, s30, 5")
    e("s_add_u32 s40, s40, s41")
    for f in range(4):
        e(f"buffer_load_dwordx2 v[{BB + 2 * f}:{BB + 2 * f + 1}], v12, s[4:7], s40 offen offset:{32 * f}")
    e("s_nop 7")
    e("s_waitcnt vmcnt(0)")
    for f in range(4):
        a = ACC + 4 * f
        x = BB + 2 * f
        for q in range(2):
            e(f"v_cvt_pk_bf16_f32 v{T}, v{a + 2 * q}, v{a + 2 * q + 1}")
            e(f"v_lshlrev_b32 v{T + 1}, 16, v{T}")
            e(f"v_and_b32 v{T + 2}, 0xffff0000, v{T}")
            e(f"v_lshlrev_b32 v{T + 3}, 16, v{x + q}")
            e(f"v_and_b32 v{T + 4}, 0xffff0000, v{x + q}")
            e(f"v_add_f32 v{T + 1}, v{T + 1}, v{T + 3}")
            e(f"v_add_f32 v{T + 2}, v{T + 2}, v{T + 4}")
            e(f"v_cvt_pk_bf16_f32 v{x + q}, v{T + 1}, v{T + 2}")
        e(f"buffer_store_dwordx2 v[{x}:{x + 1}], v12, s[20:23], s40 offen offset:{32 * f}")
    k.label(f"{name}_done")
    e("s_endpgm")
    return k
```

```python
from core import *
from kcommon import *


def gen(layer):
    name = f"k3l{layer}_kernel"
    k = Kern(name, (256, 1, 1), (256, 1, 1), 32768, nvgpr=224, nsgpr=64)
    e = k.e
    e("s_cmp_ge_u32 s2, 256")
    e(f"s_cbranch_scc1 {name}_done")
    e("s_load_dwordx2 s[24:25], s[0:1], 88")
    e("s_load_dwordx2 s[26:27], s[0:1], 48")
    e("v_lshrrev_b32 v9, 6, v0")
    lane_setup(k, 1, 2, 3, 4)
    e("v_readfirstlane_b32 s3, v9")
    afrag_addr_setup(k, 5, 3, 4, 9)
    e("s_lshr_b32 s28, s2, 2")
    e("s_and_b32 s29, s2, 3")
    e("s_mul_i32 s29, s29, 28")
    e("s_mul_i32 s35, s3, 7")
    e("s_add_u32 s29, s29, s35")
    e("s_waitcnt lgkmcnt(0)")
    k.ws_srd(4, 24, 'X1' if layer == 1 else 'X3')
    k.ws_srd(8, 24, 'W1')
    k.srd(12, 26, 0, F * 2)
    k.ws_srd(16, 24, 'HB')
    e(f"s_mul_i32 s30, s28, {32 * 896}")
    e("s_lshl_b32 s31, s29, 10")
    ACC, BB, AB, VX, VT = 16, 72, 156, 172, 200
    ln_loads(k, 4, 30, VX, 10, 9)
    MT, NT, KS, PD = 2, 7, 14, 3
    for s in range(PD):
        issue_b(k, s, NT, BB + s * 28, 2, 8, 31, 33, 112 * 1024)
    k.vm_wait('lnx')
    ln_compute_store(k, VX, VT, 34)
    e("s_waitcnt lgkmcnt(0)")
    e("s_barrier")
    main_loop(k, MT, NT, KS, PD, ACC, BB, AB, 5, 2, 8, 31, 33, 112 * 1024)
    e("v_lshlrev_b32 v12, 3, v4")
    e("s_lshl_b32 s36, s29, 5")
    for f in range(NT):
        e(f"buffer_load_dwordx2 v[{BB + 2 * f}:{BB + 2 * f + 1}], v12, s[12:15], s36 offen offset:{32 * f}")
    e("v_mul_u32_u24 v13, 3584, v3")
    e("v_lshl_add_u32 v13, v4, 3, v13")
    e(f"s_mul_i32 s37, s28, {32 * 3584}")
    e("s_add_u32 s37, s37, s36")
    e(f"s_add_u32 s38, s37, {16 * 3584}")
    e("s_nop 7")
    e("s_waitcnt vmcnt(0)")
    T = VT
    for f in range(NT):
        b = BB + 2 * f
        for i in range(MT):
            a = ACC + (f * MT + i) * 4
            for q in range(2):
                e(f"v_cvt_pk_bf16_f32 v{T}, v{a + 2 * q}, v{a + 2 * q + 1}")
                e(f"v_lshlrev_b32 v{T + 1}, 16, v{T}")
                e(f"v_and_b32 v{T + 2}, 0xffff0000, v{T}")
                e(f"v_lshlrev_b32 v{T + 3}, 16, v{b + q}")
                e(f"v_and_b32 v{T + 4}, 0xffff0000, v{b + q}")
                e(f"v_add_f32 v{T + 1}, v{T + 1}, v{T + 3}")
                e(f"v_add_f32 v{T + 2}, v{T + 2}, v{T + 4}")
                e(f"v_cvt_pk_bf16_f32 v{T}, v{T + 1}, v{T + 2}")
                e(f"v_lshlrev_b32 v{T + 1}, 16, v{T}")
                e(f"v_and_b32 v{T + 2}, 0xffff0000, v{T}")
                e(f"v_max_f32 v{T + 1}, 0, v{T + 1}")
                e(f"v_max_f32 v{T + 2}, 0, v{T + 2}")
                e(f"v_mul_f32 v{T + 1}, v{T + 1}, v{T + 1}")
                e(f"v_mul_f32 v{T + 2}, v{T + 2}, v{T + 2}")
                e(f"v_cvt_pk_bf16_f32 v{a + q}, v{T + 1}, v{T + 2}")
            e(f"buffer_store_dwordx2 v[{a}:{a + 1}], v13, s[16:19], s{37 + i} offen offset:{32 * f}")
    k.label(f"{name}_done")
    e("s_endpgm")
    return k
```

```python
from core import *
from kcommon import *


def gen(layer):
    name = f"k4l{layer}_kernel"
    k = Kern(name, (224, 1, 1), (256, 1, 1), 131072, nvgpr=224, nsgpr=64)
    e = k.e
    e("s_cmp_ge_u32 s2, 224")
    e(f"s_cbranch_scc1 {name}_done")
    e("s_load_dwordx2 s[24:25], s[0:1], 88")
    e("s_load_dwordx2 s[26:27], s[0:1], 64")
    e("s_load_dwordx2 s[44:45], s[0:1], 72")
    e("v_lshrrev_b32 v9, 6, v0")
    lane_setup(k, 1, 2, 3, 4)
    e("v_readfirstlane_b32 s3, v9")
    afrag_addr_setup(k, 5, 3, 4, 9)
    for q in range(4):
        e(f"v_add_u32 v{10 + q}, 0x10000, v{5 + q}")
    e(f"s_mul_hi_u32 s28, s2, {magic(7):#x}")
    e("s_mul_i32 s29, s28, 7")
    e("s_sub_u32 s29, s2, s29")
    e("s_lshl_b32 s29, s29, 2")
    e("s_add_u32 s29, s29, s3")
    e("s_waitcnt lgkmcnt(0)")
    k.ws_srd(4, 24, 'HB')
    k.ws_srd(8, 24, 'W2')
    k.srd(12, 26, 0, D * 2)
    k.ws_srd(16, 24, 'X1' if layer == 1 else 'X3')
    if layer == 1:
        k.ws_srd(20, 24, 'X2')
    else:
        k.srd(20, 44, 0, S * D * 2)
    e(f"s_mul_i32 s30, s28, {64 * 3584}")
    e("s_lshl_b32 s31, s29, 10")
    e("v_lshrrev_b32 v14, 3, v0")
    e("v_mul_u32_u24 v14, 3584, v14")
    e("v_and_b32 v15, 7, v0")
    e("v_lshl_add_u32 v14, v15, 4, v14")
    e("v_lshrrev_b32 v16, 3, v0")
    e("v_and_b32 v17, 15, v16")
    e("v_xor_b32 v18, v15, v17")
    e("v_lshlrev_b32 v18, 4, v18")
    e("v_add_u32 v15, 8, v15")
    e("v_xor_b32 v19, v15, v17")
    e("v_lshlrev_b32 v19, 4, v19")
    e("v_lshlrev_b32 v16, 10, v16")
    e("v_add_u32 v18, v18, v16")
    e("v_add_u32 v19, v19, v16")
    MT, KS, PD = 4, 56, 8
    ACC, BB, AB, ST = 20, 36, 68, 100
    T = 160

    def stage_loads(kc):
        for half in range(2):
            e(f"s_add_u32 s34, s30, {half * 32 * 3584 + kc * 896}")
            for i in range(7):
                e(f"buffer_load_dwordx4 {vr(ST + half * 28 + 4 * i, 4)}, v14, s[4:7], s34 offen offset:{128 * i}")
                k.vm(f"st{kc}")

    def stage_write(kc):
        k.vm_wait(f"st{kc}")
        base = (kc % 2) * 65536
        for half in range(2):
            for i in range(7):
                va = 18 if i % 2 == 0 else 19
                off = base + half * 32768 + (i >> 1) * 256
                e(f"ds_write_b128 v{va}, {vr(ST + half * 28 + 4 * i, 4)} offset:{off}" if base == 0 else
                  f"ds_write_b128 v{va + 140}, {vr(ST + half * 28 + 4 * i, 4)} offset:{off - 65536}")

    e("v_add_u32 v158, 0x10000, v18")
    e("v_add_u32 v159, 0x10000, v19")
    stage_loads(0)
    for s in range(PD):
        issue_b(k, s, 1, BB + s * 4, 2, 8, 31, 33, 28 * 1024)
    stage_write(0)
    stage_loads(1)
    e("s_waitcnt lgkmcnt(0)")
    e("s_barrier")
    for kc in range(4):
        vA = 5 if kc % 2 == 0 else 10
        issue_a(k, 0, MT, AB, vA)
        for sl in range(14):
            s = kc * 14 + sl
            bb = BB + (s % PD) * 4
            ab = AB + (sl % 2) * 16
            if sl + 1 < 14:
                issue_a(k, sl + 1, MT, AB + ((sl + 1) % 2) * 16, vA)
            k.vm_wait(f"B{s}")
            k.lg_wait(f"A{sl}")
            for i in range(MT):
                d = ACC + i * 4
                c = "0" if s == 0 else vr(d, 4)
                e(f"v_mfma_f32_16x16x32_bf16 {vr(d, 4)}, {vr(bb, 4)}, {vr(ab + 4 * i, 4)}, {c}")
            if s + PD < KS:
                issue_b(k, s + PD, 1, bb, 2, 8, 31, 33, 28 * 1024)
        if kc + 1 < 4:
            stage_write(kc + 1)
            if kc + 2 < 4:
                stage_loads(kc + 2)
            e("s_waitcnt lgkmcnt(0)")
            e("s_barrier")
    e("v_lshlrev_b32 v12, 3, v4")
    e("s_lshl_b32 s36, s29, 5")
    e(f"buffer_load_dwordx2 v[{BB}:{BB + 1}], v12, s[12:15], s36 offen")
    e("v_mul_u32_u24 v13, 896, v3")
    e("v_lshl_add_u32 v13, v4, 3, v13")
    e(f"s_mul_i32 s37, s28, {64 * 896}")
    e("s_add_u32 s37, s37, s36")
    for i in range(MT):
        e(f"s_add_u32 s{38 + i}, s37, {i * 16 * 896}")
        e(f"buffer_load_dwordx2 v[{BB + 2 + 2 * i}:{BB + 3 + 2 * i}], v13, s[16:19], s{38 + i} offen")
    e("s_nop 7")
    e("s_waitcnt vmcnt(0)")
    for i in range(MT):
        a = ACC + 4 * i
        x = BB + 2 + 2 * i
        for q in range(2):
            e(f"v_cvt_pk_bf16_f32 v{T}, v{a + 2 * q}, v{a + 2 * q + 1}")
            e(f"v_lshlrev_b32 v{T + 1}, 16, v{T}")
            e(f"v_and_b32 v{T + 2}, 0xffff0000, v{T}")
            e(f"v_lshlrev_b32 v{T + 3}, 16, v{BB + q}")
            e(f"v_and_b32 v{T + 4}, 0xffff0000, v{BB + q}")
            e(f"v_add_f32 v{T + 1}, v{T + 1}, v{T + 3}")
            e(f"v_add_f32 v{T + 2}, v{T + 2}, v{T + 4}")
            e(f"v_cvt_pk_bf16_f32 v{T}, v{T + 1}, v{T + 2}")
            e(f"v_lshlrev_b32 v{T + 1}, 16, v{T}")
            e(f"v_and_b32 v{T + 2}, 0xffff0000, v{T}")
            e(f"v_lshlrev_b32 v{T + 3}, 16, v{x + q}")
            e(f"v_and_b32 v{T + 4}, 0xffff0000, v{x + q}")
            e(f"v_add_f32 v{T + 1}, v{T + 1}, v{T + 3}")
            e(f"v_add_f32 v{T + 2}, v{T + 2}, v{T + 4}")
            e(f"v_cvt_pk_bf16_f32 v{x + q}, v{T + 1}, v{T + 2}")
        e(f"buffer_store_dwordx2 v[{x}:{x + 1}], v13, s[20:23], s{38 + i} offen")
    k.label(f"{name}_done")
    e("s_endpgm")
    return k
```

```python
from core import *
import struct


def f32bits(x):
    return struct.unpack("<I", struct.pack("<f", x))[0]


def lane_setup(k, v_lane, v_lane16, v_c, v_g):
    e = k.e
    e(f"v_and_b32 v{v_lane}, 63, v0")
    e(f"v_lshlrev_b32 v{v_lane16}, 4, v{v_lane}")
    e(f"v_and_b32 v{v_c}, 15, v{v_lane}")
    e(f"v_lshrrev_b32 v{v_g}, 4, v{v_lane}")


def afrag_addr_setup(k, vA4, v_c, v_g, vt):
    e = k.e
    for q in range(4):
        e(f"v_add_u32 v{vt}, {4 * q}, v{v_g}")
        e(f"v_xor_b32 v{vt}, v{vt}, v{v_c}")
        e(f"v_lshlrev_b32 v{vt}, 4, v{vt}")
        e(f"v_lshl_add_u32 v{vA4 + q}, v{v_c}, 10, v{vt}")


def ln_loads(k, sX, s_rowbase, vX, vOff, vt, nhalf=1):
    e = k.e
    e(f"v_lshrrev_b32 v{vt}, 3, v0")
    e(f"v_mul_u32_u24 v{vt}, 896, v{vt}")
    e(f"v_and_b32 v{vOff}, 7, v0")
    e(f"v_lshl_add_u32 v{vOff}, v{vOff}, 4, v{vt}")
    for i in range(7):
        e(f"buffer_load_dwordx4 {vr(vX + 4 * i, 4)}, v{vOff}, {sr(sX, 4)}, s{s_rowbase} offen offset:{128 * i}")
        k.vm('lnx')


def ln_compute_store(k, vX, vt, s_tmp):
    e = k.e
    vS0, vS1, vQ0, vQ1 = vt, vt + 1, vt + 2, vt + 3
    e(f"s_mov_b32 s{s_tmp}, 0x3f803f80")
    for r in (vS0, vS1, vQ0, vQ1):
        e(f"v_mov_b32 v{r}, 0")
    for d in range(28):
        e(f"v_dot2_f32_bf16 v{vS0 + (d & 1)}, v{vX + d}, s{s_tmp}, v{vS0 + (d & 1)}")
        e(f"v_dot2_f32_bf16 v{vQ0 + (d & 1)}, v{vX + d}, v{vX + d}, v{vQ0 + (d & 1)}")
    e("s_nop 3")
    e(f"v_add_f32 v{vS0}, v{vS0}, v{vS1}")
    e(f"v_add_f32 v{vQ0}, v{vQ0}, v{vQ1}")
    for dpp in ("quad_perm:[1,0,3,2]", "quad_perm:[2,3,0,1]", "row_half_mirror"):
        e("s_nop 1")
        e(f"v_add_f32_dpp v{vS1}, v{vS0}, v{vS0} {dpp} row_mask:0xf bank_mask:0xf")
        e(f"v_add_f32_dpp v{vQ1}, v{vQ0}, v{vQ0} {dpp} row_mask:0xf bank_mask:0xf")
        e(f"v_mov_b32 v{vS0}, v{vS1}")
        e(f"v_mov_b32 v{vQ0}, v{vQ1}")
    vMean, vVar, vT, vNm, vRs = vt + 4, vt + 5, vt + 6, vt + 8, vt + 10
    e(f"s_mov_b32 s{s_tmp}, {f32bits(1.0 / 448):#x}")
    e(f"v_mul_f32 v{vMean}, s{s_tmp}, v{vS0}")
    e(f"v_mul_f32 v{vVar}, s{s_tmp}, v{vQ0}")
    e(f"v_fma_f32 v{vVar}, -v{vMean}, v{vMean}, v{vVar}")
    e(f"v_max_f32 v{vVar}, 0, v{vVar}")
    e(f"v_cvt_pk_bf16_f32 v{vT}, v{vMean}, v{vVar}")
    e(f"v_lshlrev_b32 v{vNm}, 16, v{vT}")
    e(f"v_sub_f32 v{vNm}, 0, v{vNm}")
    e(f"v_mov_b32 v{vNm + 1}, v{vNm}")
    e(f"v_and_b32 v{vVar}, 0xffff0000, v{vT}")
    e(f"s_mov_b32 s{s_tmp}, {f32bits(1e-5):#x}")
    e(f"v_add_f32 v{vVar}, s{s_tmp}, v{vVar}")
    e(f"v_cvt_pk_bf16_f32 v{vT}, v{vVar}, v{vVar}")
    e(f"v_lshlrev_b32 v{vVar}, 16, v{vT}")
    e(f"v_sqrt_f32 v{vVar}, v{vVar}")
    e("s_nop 0")
    e(f"v_cvt_pk_bf16_f32 v{vT}, v{vVar}, v{vVar}")
    e(f"v_lshlrev_b32 v{vVar}, 16, v{vT}")
    e(f"v_rcp_f32 v{vRs}, v{vVar}")
    e("s_nop 0")
    e(f"v_mov_b32 v{vRs + 1}, v{vRs}")
    vP = vt + 12
    for d in range(28):
        x = vX + d
        e(f"v_lshlrev_b32 v{vP}, 16, v{x}")
        e(f"v_and_b32 v{vP + 1}, 0xffff0000, v{x}")
        e(f"v_pk_add_f32 v[{vP}:{vP + 1}], v[{vP}:{vP + 1}], v[{vNm}:{vNm + 1}]")
        e(f"v_cvt_pk_bf16_f32 v{x}, v{vP}, v{vP + 1}")
        e(f"v_lshlrev_b32 v{vP}, 16, v{x}")
        e(f"v_and_b32 v{vP + 1}, 0xffff0000, v{x}")
        e(f"v_pk_mul_f32 v[{vP}:{vP + 1}], v[{vP}:{vP + 1}], v[{vRs}:{vRs + 1}]")
        e(f"v_cvt_pk_bf16_f32 v{x}, v{vP}, v{vP + 1}")
    lds_tile_store(k, vX, vt, 0)


def lds_tile_store(k, vX, vt, lds_base, rowhalf=0):
    e = k.e
    vRow, vSub, vA0, vA1 = vt, vt + 1, vt + 2, vt + 3
    e(f"v_lshrrev_b32 v{vRow}, 3, v0")
    e(f"v_and_b32 v{vSub}, 7, v0")
    e(f"v_and_b32 v{vA0}, 15, v{vRow}")
    e(f"v_xor_b32 v{vA1}, v{vSub}, v{vA0}")
    e(f"v_lshlrev_b32 v{vA1}, 4, v{vA1}")
    e(f"v_add_u32 v{vSub}, 8, v{vSub}")
    e(f"v_xor_b32 v{vA0}, v{vSub}, v{vA0}")
    e(f"v_lshlrev_b32 v{vA0}, 4, v{vA0}")
    e(f"v_lshlrev_b32 v{vRow}, 10, v{vRow}")
    e(f"v_add_u32 v{vA1}, v{vA1}, v{vRow}")
    e(f"v_add_u32 v{vA0}, v{vA0}, v{vRow}")
    for i in range(7):
        va = vA1 if i % 2 == 0 else vA0
        e(f"ds_write_b128 v{va}, {vr(vX + 4 * i, 4)} offset:{lds_base + rowhalf * 32768 + (i >> 1) * 256}")


def issue_b(k, s, NT, bb, v_lane16, sB, s_wavebase, s_tmp, step_stride):
    e = k.e
    for f in range(NT):
        if f % 4 == 0:
            e(f"s_add_u32 s{s_tmp}, s{s_wavebase}, {s * step_stride + f * 1024:#x}")
        e(f"buffer_load_dwordx4 {vr(bb + 4 * f, 4)}, v{v_lane16}, {sr(sB, 4)}, s{s_tmp} offen offset:{(f % 4) * 1024}")
        k.vm(f"B{s}")


def issue_a(k, s, MT, ab, vA4, lds_base=0):
    for i in range(MT):
        k.e(f"ds_read_b128 {vr(ab + 4 * i, 4)}, v{vA4 + s % 4} offset:{lds_base + (s // 4) * 256 + i * 16384}")
        k.lg(f"A{s}")


def main_loop(k, MT, NT, KS, PD, acc, bbuf, abuf, vA4, v_lane16, sB, s_wavebase, s_tmp, step_stride, normal_tiles=()):
    e = k.e
    issue_a(k, 0, MT, abuf, vA4)
    for s in range(KS):
        bb = bbuf + (s % (PD)) * NT * 4
        ab = abuf + (s % 2) * MT * 4
        if s + 1 < KS:
            issue_a(k, s + 1, MT, abuf + ((s + 1) % 2) * MT * 4, vA4)
        k.vm_wait(f"B{s}")
        k.lg_wait(f"A{s}")
        for f in range(NT):
            for i in range(MT):
                d = acc + (f * MT + i) * 4
                c = "0" if s == 0 else vr(d, 4)
                if f in normal_tiles:
                    e(f"v_mfma_f32_16x16x32_bf16 {vr(d, 4)}, {vr(ab + 4 * i, 4)}, {vr(bb + 4 * f, 4)}, {c}")
                else:
                    e(f"v_mfma_f32_16x16x32_bf16 {vr(d, 4)}, {vr(bb + 4 * f, 4)}, {vr(ab + 4 * i, 4)}, {c}")
        if s + PD < KS:
            issue_b(k, s + PD, NT, bb, v_lane16, sB, s_wavebase, s_tmp, step_stride)
```

```python
from core import *

N_QKV, N_WO, N_W1, N_W2, N_PHI, N_Z = 1344, 512, 1568, 1568, 32, 256
R0 = N_QKV
R1 = R0 + N_WO
R2 = R1 + N_W1
R3 = R2 + N_W2
R4 = R3 + N_PHI
R5 = R4 + N_Z
NWG = R5 // 4
OOB = 0x80000000


def gen():
    k = Kern("prep_kernel", (NWG, 1, 1), (256, 1, 1), 0, nvgpr=32, nsgpr=48)
    e = k.e
    e(f"s_cmp_ge_u32 s2, {NWG}")
    e("s_cbranch_scc1 prep_done")
    e("s_load_dwordx2 s[4:5], s[0:1], 8")
    e("s_load_dwordx2 s[6:7], s[0:1], 16")
    e("s_load_dwordx2 s[8:9], s[0:1], 24")
    e("s_load_dwordx2 s[10:11], s[0:1], 40")
    e("s_load_dwordx2 s[12:13], s[0:1], 56")
    e("s_load_dwordx2 s[14:15], s[0:1], 88")
    e("v_lshrrev_b32 v1, 6, v0")
    e("v_and_b32 v2, 63, v0")
    e("v_readfirstlane_b32 s3, v1")
    e("v_lshrrev_b32 v3, 4, v2")
    e("v_and_b32 v4, 15, v2")
    e("v_lshlrev_b32 v5, 4, v2")
    e("v_mov_b32 v7, 0x80000000")
    e("s_lshl_b32 s16, s2, 2")
    e("s_add_u32 s16, s16, s3")
    e("s_waitcnt lgkmcnt(0)")

    def loads(stride, split=None):
        for j in range(8):
            if split is None:
                vb, so = "v6", j * stride
            else:
                vb, so = split(j)
            e(f"s_mov_b32 s17, {so}")
            e(f"buffer_load_ushort v{16 + j}, {vb}, s[20:23], s17 offen")

    def store(local_sreg):
        e(f"s_lshl_b32 s18, {local_sreg}, 10")
        e("s_waitcnt vmcnt(0)")
        for q in range(4):
            e(f"v_lshl_or_b32 v{8 + q}, v{17 + 2 * q}, 16, v{16 + 2 * q}")
        e("buffer_store_dwordx4 v[8:11], v5, s[24:27], s18 offen")
        e("s_branch prep_done")

    e(f"s_cmp_ge_u32 s16, {R0}")
    e("s_cbranch_scc1 prep_wo")
    k.srd(20, 4, 0, 448 * 1344 * 2)
    k.ws_srd(24, 14, 'WQKV')
    e(f"s_mul_hi_u32 s28, s16, {magic(84):#x}")
    e("s_mul_i32 s29, s28, 84")
    e("s_sub_u32 s29, s16, s29")
    e(f"s_mul_hi_u32 s30, s29, {magic(6):#x}")
    e("s_mul_i32 s31, s30, 6")
    e("s_sub_u32 s31, s29, s31")
    e("s_lshr_b32 s32, s31, 1")
    e("s_and_b32 s33, s31, 1")
    e("s_mul_i32 s34, s32, 448")
    e("s_mul_i32 s35, s28, 28")
    e("s_add_u32 s34, s34, s35")
    e("s_lshl_b32 s35, s33, 4")
    e("s_add_u32 s34, s34, s35")
    e("s_lshl_b32 s36, s30, 5")
    e("v_lshlrev_b32 v6, 3, v3")
    e("v_add_u32 v6, s36, v6")
    e("v_mul_u32_u24 v6, 1344, v6")
    e("v_add_u32 v6, s34, v6")
    e("v_add_u32 v6, v6, v4")
    e("v_lshlrev_b32 v6, 1, v6")
    e("v_add_u32 v12, s35, v4")
    e("v_cmp_gt_u32 vcc, 28, v12")
    e("s_nop 1")
    e("v_cndmask_b32 v6, v7, v6, vcc")
    loads(2688)
    store("s16")

    k.label("prep_wo")
    e(f"s_cmp_ge_u32 s16, {R1}")
    e("s_cbranch_scc1 prep_w1")
    e(f"s_sub_u32 s19, s16, {R0}")
    k.srd(20, 8, 0, 448 * 448 * 2)
    k.ws_srd(24, 14, 'WO')
    e("s_lshr_b32 s28, s19, 5")
    e("s_and_b32 s29, s19, 31")
    e("s_mul_i32 s30, s28, 28")
    e("s_lshl_b32 s31, s29, 4")
    e("v_lshlrev_b32 v6, 3, v3")
    e("v_add_u32 v6, s30, v6")
    e("v_mul_u32_u24 v6, 448, v6")
    e("v_add_u32 v6, s31, v6")
    e("v_add_u32 v6, v6, v4")
    e("v_lshlrev_b32 v6, 1, v6")
    e("s_cmp_lt_u32 s29, 28")
    e("s_cselect_b32 s32, 0, 0x80000000")
    e("v_or_b32 v6, s32, v6")
    e("v_cmp_gt_u32 vcc, 3, v3")
    e("s_nop 1")
    e("v_cndmask_b32 v13, v7, v6, vcc")
    loads(896, split=lambda j: ("v6", j * 896) if j < 4 else ("v13", j * 896))
    store("s19")

    k.label("prep_w1")
    e(f"s_cmp_ge_u32 s16, {R2}")
    e("s_cbranch_scc1 prep_w2")
    e(f"s_sub_u32 s19, s16, {R1}")
    k.srd(20, 10, 0, 448 * 1792 * 2)
    k.ws_srd(24, 14, 'W1')
    e(f"s_mul_hi_u32 s28, s19, {magic(112):#x}")
    e("s_mul_i32 s29, s28, 112")
    e("s_sub_u32 s29, s19, s29")
    e("s_lshl_b32 s30, s28, 5")
    e("s_lshl_b32 s31, s29, 4")
    e("v_lshlrev_b32 v6, 3, v3")
    e("v_add_u32 v6, s30, v6")
    e("v_mul_u32_u24 v6, 1792, v6")
    e("v_add_u32 v6, s31, v6")
    e("v_add_u32 v6, v6, v4")
    e("v_lshlrev_b32 v6, 1, v6")
    loads(3584)
    store("s19")

    k.label("prep_w2")
    e(f"s_cmp_ge_u32 s16, {R3}")
    e("s_cbranch_scc1 prep_phi")
    e(f"s_sub_u32 s19, s16, {R2}")
    k.srd(20, 12, 0, 1792 * 448 * 2)
    k.ws_srd(24, 14, 'W2')
    e(f"s_mul_hi_u32 s28, s19, {magic(28):#x}")
    e("s_mul_i32 s29, s28, 28")
    e("s_sub_u32 s29, s19, s29")
    e("s_lshl_b32 s30, s28, 5")
    e("s_lshl_b32 s31, s29, 4")
    e("v_lshlrev_b32 v6, 3, v3")
    e("v_add_u32 v6, s30, v6")
    e("v_mul_u32_u24 v6, 448, v6")
    e("v_add_u32 v6, s31, v6")
    e("v_add_u32 v6, v6, v4")
    e("v_lshlrev_b32 v6, 1, v6")
    loads(896)
    store("s19")

    k.label("prep_phi")
    e(f"s_cmp_ge_u32 s16, {R4}")
    e("s_cbranch_scc1 prep_zero")
    e(f"s_sub_u32 s19, s16, {R3}")
    k.srd(20, 6, 0, 16 * 28 * 28 * 2)
    k.ws_srd(24, 14, 'WPHI')
    e("s_lshr_b32 s28, s19, 1")
    e("s_and_b32 s29, s19, 1")
    e("s_mul_i32 s30, s28, 784")
    e("s_lshl_b32 s31, s29, 4")
    e("s_add_u32 s30, s30, s31")
    e("v_mul_u32_u24 v6, 112, v3")
    e("v_add_u32 v6, s30, v6")
    e("v_add_u32 v6, v6, v4")
    e("v_lshlrev_b32 v6, 1, v6")
    e("v_add_u32 v12, s31, v4")
    e("v_cmp_gt_u32 vcc, 28, v12")
    e("s_nop 1")
    e("v_cndmask_b32 v6, v7, v6, vcc")
    e("v_cmp_gt_u32 vcc, 3, v3")
    e("s_nop 1")
    e("v_cndmask_b32 v13, v7, v6, vcc")
    loads(56, split=lambda j: ("v6", j * 56) if j < 4 else ("v13", 896 + (j - 4) * 56))
    store("s19")

    k.label("prep_zero")
    e(f"s_sub_u32 s19, s16, {R4}")
    k.ws_srd(24, 14, 'KVACC')
    e("v_mov_b32 v8, 0")
    e("v_mov_b32 v9, 0")
    e("v_mov_b32 v10, 0")
    e("v_mov_b32 v11, 0")
    e("s_lshl_b32 s18, s19, 10")
    e("buffer_store_dwordx4 v[8:11], v5, s[24:27], s18 offen")
    k.label("prep_done")
    e("s_endpgm")
    return k
```

```python
import sys, os
sys.path.insert(0, os.path.dirname(os.path.abspath(__file__)))
from core import *
import kprep, k1, k2, k3, k4

HEAD = open(os.path.join(os.path.dirname(os.path.abspath(__file__)), "..", "cdna_kernels",
     "interleave_layers__linear_kernel_hedgehog__dense_activation_squared_relu__prompt.s.ref")).read().split("; Override")[0]


def build(kerns, order):
    out = [HEAD.rstrip()]
    for kk in order:
        out.append(f"; @launch kernel={kk.name} grid=({kk.grid[0]},{kk.grid[1]},{kk.grid[2]}) block=({kk.block[0]},{kk.block[1]},{kk.block[2]}) lds={kk.lds}")
    out.append('.amdgcn_target "amdgcn-amd-amdhsa--gfx950"')
    out.append(".text")
    for kk in kerns:
        out.append(kk.text())
    out.append('.section .rodata,"a"')
    for kk in kerns:
        out.append(".p2align 6")
        out.append(kk.desc())
    return "\n".join(out) + "\n"


if __name__ == "__main__":
    P = kprep.gen()
    ks = [P]
    for L in (1, 2):
        ks += [k1.gen(L), k2.gen(L), k3.gen(L), k4.gen(L)]
    txt = build(ks, ks)
    dst = sys.argv[1] if len(sys.argv) > 1 else os.path.join(os.path.dirname(os.path.abspath(__file__)), "..", "cdna_kernels",
        "interleave_layers__linear_kernel_hedgehog__dense_activation_squared_relu__prompt.s")
    open(dst, "w").write(txt)
    print("wrote", dst, len(txt), "bytes; ws used", WS_TOTAL)
```
